```python
import torch

def _softmax(x, axis=-1):
    return torch.softmax(x, dim=axis)
def _gelu(x):
    return torch.nn.functional.gelu(x, approximate="tanh")
def _silu(x):
    return torch.nn.functional.silu(x)
def _sigmoid(x):
    return torch.sigmoid(x)
def _layernorm(x, axis=-1, eps=1e-5):
    m = x.mean(dim=axis, keepdim=True)
    v = x.var(dim=axis, keepdim=True, unbiased=False)
    return (x - m) / torch.sqrt(v + eps)
def _scatter_add(tgt, idx, src, axis=0):
    return tgt.clone().index_add_(axis, idx, src)
def _segment_sum(src, seg, n):
    out = torch.zeros((n,) + src.shape[1:], dtype=src.dtype)
    return out.index_add_(0, seg, src)
def _pad(x, pw):
    flat = tuple(v for pair in reversed(pw) for v in pair)
    return torch.nn.functional.pad(x, flat)

kernel_name = 'standalone__softmax_full_bidir__sampling'

def setup_inputs():

    _w = (lambda a: (lambda t: t.to(torch.bfloat16) if t.is_floating_point() else t)(torch.as_tensor(a)))
    B, H, Sq, Skv, Dh = 16, 32, 1, 2048, 128
    return {
        "q": _w((lambda *s: torch.randn(*s, dtype=torch.bfloat16) * 0.8)(B, H, Sq, Dh)),
        "k": _w((lambda *s: torch.randn(*s, dtype=torch.bfloat16) * 0.8)(B, H, Skv, Dh)),
        "v": _w((lambda *s: torch.randn(*s, dtype=torch.bfloat16) * 0.05)(B, H, Skv, Dh)),
    }

def reference(q, k, v):
    scale = q.shape[-1] ** -0.5
    scores = torch.einsum('bhqd,bhkd->bhqk', q, k) * scale
    attn = _softmax(scores, axis=-1)
    return torch.einsum('bhqk,bhkd->bhqd', attn, v)
```

```python
import argparse, math, struct

NAME = "standalone__softmax_full_bidir__sampling"
HEADS = 512
HEAD_BYTES = 2048 * 256

def f32bits(x):
    return struct.unpack("<I", struct.pack("<f", x))[0]

def gen(W=2, R=16, win="a", hi=0, E=0, flags="nt", lds=0, stamp=0, pair=0, I0=0, perm=0, BL=1, SB=12, rot=0):
    U = R // 4
    G = 128 // W
    NIT = G // U
    assert G % U == 0 and NIT >= 2
    wn = [int(x, 36) for x in win]
    while len(wn) < R:
        wn = wn + wn
    wn = wn[:R]
    assert max(wn) <= R
    hi = hi or R
    NWG = HEADS // 2
    PO = 0
    PM = 2 * W * 512
    ldsz = max(lds, PM + 2 * W * 8 if W > 1 else 0)
    o = []
    e = o.append
    hdr = open("cdna_kernels/%s.s.ref" % NAME).read().split("\n")
    for l in hdr:
        if l.startswith("; @launch"):
            e("; @launch grid=(%d,1,1) block=(%d,1,1) lds=%d" % (NWG, 64 * W, ldsz))
        elif l.startswith(";"):
            e(l)
        else:
            break
    e('.amdgcn_target "amdgcn-amd-amdhsa--gfx950"')
    e(".text")
    e(".globl %s_kernel" % NAME)
    e(".p2align 8")
    e(".type %s_kernel,@function" % NAME)
    e("%s_kernel:" % NAME)
    vLANE = 0; vOFF = 1; vT = 2; vX = 3; vM = 4; vL = 5; vT2 = 6; vST = 7
    vMASK = 8
    vQ = 12
    vACC = 28
    vQB = 36
    vKOFF = 40; vBANK = 41; vR0 = 42; vR1 = 43
    vP = 44
    vS = vP + U
    vEND = max(vS + G, vS + 4 * W + 4)
    ACC0 = (vEND + 3) // 4 * 4
    def buf(i):
        b = 4 * (i % R)
        return "a[%d:%d]" % (b, b + 3)
    sS = 8; sQ = 16; sO = 20; sOFF = 24; sW = 25; sC = 26; sOFF0 = 27
    sIT = 36; sIDX = 37; sHD = 38; sNR = 39; sT = 40; sTOT = 41
    sKB = 30
    c = (128 ** -0.5) * math.log2(math.e)
    fl = (" " + flags) if flags else ""
    step = 4096 * W
    def stampit(k):
        if stamp:
            e("    s_memrealtime s[%d:%d]" % (44 + 2 * k, 45 + 2 * k))
    e("    s_cmp_ge_u32 s2, %d" % NWG)
    e("    s_cbranch_scc1 L_done")
    e("    s_load_dwordx4 s[4:7], s[0:1], 0")
    e("    s_load_dwordx4 s[12:15], s[0:1], 16")
    if stamp:
        e("    s_load_dwordx2 s[58:59], s[0:1], 40")
    stampit(0)
    if W > 1:
        e("    v_lshrrev_b32 v%d, 6, v0" % vT)
        e("    v_and_b32 v0, 63, v0")
        e("    v_readfirstlane_b32 s%d, v%d" % (sW, vT))
    e("    v_and_b32 v%d, 3, v%d" % (vX, vLANE))
    e("    v_lshrrev_b32 v%d, 4, v%d" % (vT, vLANE))
    e("    v_lshlrev_b32 v%d, 6, v%d" % (vT, vT))
    e("    v_lshl_add_u32 v%d, v%d, 4, v%d" % (vX, vX, vT))
    e("    v_bfe_u32 v%d, v%d, 2, 2" % (vBANK, vLANE))
    e("    v_lshl_add_u32 v%d, v%d, 8, v%d" % (vOFF, vBANK, vX))
    if pair == 0:
        dH = 256
        e("    s_mov_b32 s33, s2")
    else:
        dH = 1
        e("    s_lshl_b32 s33, s2, 1")
    e("    s_lshl_b32 s32, s33, 19")
    e("    s_lshl_b32 s3, s33, 8")
    e("    s_lshr_b32 s33, s33, 13")
    if W > 1:
        e("    s_lshl_b32 s%d, s%d, %d" % (sOFF, sW, SB))
    else:
        e("    s_mov_b32 s%d, 0" % sOFF)
    if rot:
        e("    s_mul_i32 s43, s2, %d" % (rot * step))
        e("    s_add_u32 s%d, s%d, s43" % (sOFF, sOFF))
        e("    s_and_b32 s%d, s%d, %d" % (sOFF, sOFF, HEAD_BYTES - 1))
    sSTR = 42
    if perm == 1:
        e("    s_lshr_b32 s%d, s2, 3" % sSTR)
    elif perm == 2:
        e("    s_mov_b32 s%d, s2" % sSTR)
    elif perm == 3:
        e("    s_mul_i32 s%d, s2, 0x9E3779B1" % sSTR)
        e("    s_lshr_b32 s%d, s%d, 16" % (sSTR, sSTR))
    elif perm >= 4:
        e("    s_mov_b32 s%d, %d" % (sSTR, perm // 2))
    if perm:
        e("    s_lshl_b32 s%d, s%d, 1" % (sSTR, sSTR))
        e("    s_mul_i32 s%d, s%d, %d" % (sSTR, sSTR, step * BL))
        e("    s_add_u32 s%d, s%d, %d" % (sSTR, sSTR, step))
    cnt = [0]
    def adv():
        cnt[0] += 1
        if SB > 12:
            e("    s_add_u32 s%d, s%d, 4096" % (sOFF, sOFF))
            e("    s_and_b32 s43, s%d, %d" % (sOFF, (1 << SB) - 1))
            e("    s_cselect_b32 s43, 0, %d" % ((W - 1) << SB))
            e("    s_add_u32 s%d, s%d, s43" % (sOFF, sOFF))
            return
        if rot:
            e("    s_add_u32 s%d, s%d, %d" % (sOFF, sOFF, step))
            e("    s_and_b32 s%d, s%d, %d" % (sOFF, sOFF, HEAD_BYTES - 1))
            return
        if perm and cnt[0] % BL == 0:
            e("    s_add_u32 s%d, s%d, s%d" % (sOFF, sOFF, sSTR))
            e("    s_and_b32 s%d, s%d, %d" % (sOFF, sOFF, HEAD_BYTES - 1))
        else:
            e("    s_add_u32 s%d, s%d, %d" % (sOFF, sOFF, step))
    e("    s_mov_b32 s%d, %d" % (sS + 2, HEAD_BYTES))
    e("    s_mov_b32 s%d, 0x20000" % (sS + 3))
    e("    s_mov_b32 s%d, %d" % (sQ + 2, HEADS * 256))
    e("    s_mov_b32 s%d, 0x20000" % (sQ + 3))
    e("    s_waitcnt lgkmcnt(0)")
    e("    s_mov_b32 s%d, s4" % sQ)
    e("    s_mov_b32 s%d, s5" % (sQ + 1))
    e("    s_add_u32 s%d, s6, s32" % sS)
    e("    s_addc_u32 s%d, s7, s33" % (sS + 1))
    e("    buffer_load_dwordx4 v[%d:%d], v%d, s[%d:%d], s3 offen" % (vACC, vACC + 3, vX, sQ, sQ + 3))
    def load(i):
        e("    buffer_load_dwordx4 %s, v%d, s[%d:%d], s%d offen offset:%d%s" % (buf(i), vOFF, sS, sS + 3, sOFF, (i % 4) * 1024, fl))
    e("    s_mov_b32 s%d, s%d" % (sOFF0, sOFF))
    for i in range(R):
        if I0 and i >= I0:
            e("    s_waitcnt vmcnt(%d)" % (I0 - 1))
        load(i)
        if i % 4 == 3:
            adv()
    e("    s_add_u32 s34, s3, %d" % (dH * 256))
    e("    buffer_load_dwordx4 v[%d:%d], v%d, s[%d:%d], s34 offen" % (vQB, vQB + 3, vX, sQ, sQ + 3))
    e("    s_add_u32 s28, s12, s32")
    e("    s_addc_u32 s29, s13, s33")
    e("    s_add_u32 s%d, s%d, 0x%x" % (sKB, sS, (dH * HEAD_BYTES) & 0xffffffff))
    e("    s_addc_u32 s%d, s%d, 0" % (sKB + 1, sS + 1))
    e("    s_mov_b32 s%d, s14" % sO)
    e("    s_mov_b32 s%d, s15" % (sO + 1))
    e("    s_mov_b32 s%d, %d" % (sO + 2, HEADS * 256))
    e("    s_mov_b32 s%d, 0x20000" % (sO + 3))
    e("    s_mov_b32 s%d, 0x%08x" % (sC, f32bits(c)))
    e("    s_mov_b32 s%d, 0" % sHD)
    e("    s_mov_b32 s%d, %d" % (sNR, HEAD_BYTES))
    e("    s_mov_b32 s%d, 0" % sTOT)
    e("    v_mov_b32 v%d, v%d" % (vKOFF, vOFF))
    e("    v_and_b32 v%d, 1, v%d" % (vT, vLANE))
    e("    v_lshlrev_b32 v%d, 4, v%d" % (vT, vT))
    e("    v_mov_b32 v%d, 0xffff" % vL)
    e("    v_lshlrev_b32 v%d, v%d, v%d" % (vL, vT, vL))
    e("    v_bfe_u32 v%d, v%d, 1, 2" % (vT, vLANE))
    for w in range(4):
        e("    v_cmp_eq_u32 vcc, %d, v%d" % (w, vT))
        e("    s_nop 1")
        e("    v_cndmask_b32 v%d, 0, v%d, vcc" % (vMASK + w, vL))
    e("    s_waitcnt vmcnt(%d)" % min(R + 1, 63))
    if stamp:
        e("    s_waitcnt vmcnt(%d)" % R)
        stampit(1)
    e("L_head:")
    for t in range(4):
        e("    v_cmp_eq_u32 vcc, %d, v%d" % (t, vBANK))
        e("    s_nop 1")
        for w in range(4):
            e("    v_cndmask_b32 v%d, 0, v%d, vcc" % (vQ + 4 * t + w, vACC + w))
    e("    v_mov_b32 v%d, 0xff800000" % vM)
    e("    s_mov_b32 s%d, 0" % sIT)
    e("    s_mov_b32 s%d, 0" % sIDX)
    def diag(u):
        a = vACC
        qp = lambda k: "quad_perm:[%d,%d,%d,%d] row_mask:0xf bank_mask:0xf" % (k, k, k, k)
        e("    v_mov_b32_dpp v%d, v%d %s" % (vT, a, qp(0)))
        e("    v_mov_b32_dpp v%d, v%d %s" % (vT2, a + 1, qp(1)))
        e("    s_nop 0")
        e("    v_add_f32_dpp v%d, v%d, v%d %s" % (vT, a + 2, vT, qp(2)))
        e("    v_add_f32_dpp v%d, v%d, v%d %s" % (vT2, a + 3, vT2, qp(3)))
        e("    v_add_f32 v%d, v%d, v%d" % (vX, vT, vT2))
        e("    s_set_gpr_idx_on s%d, gpr_idx(DST)" % sIDX)
        e("    v_mov_b32 v%d, v%d" % (vS + u, vX))
        e("    s_set_gpr_idx_off")
        e("    v_max_f32 v%d, v%d, v%d" % (vM, vM, vX))
    def kbody(wn):
        for u in range(U):
            for t in range(4):
                i = 4 * u + t
                e("    s_waitcnt vmcnt(%d)" % (wn[i] - 1))
                e("    v_mfma_f32_16x16x32_bf16 v[%d:%d], %s, v[%d:%d], %s" % (vACC, vACC + 3, buf(i), vQ + 4 * t, vQ + 4 * t + 3, "0" if t == 0 else "v[%d:%d]" % (vACC, vACC + 3)))
                load(i)
            adv()
            e("    s_nop 5")
            diag(u)
    X = vACC; Y = vACC + 4; BA = vQ; BB = vQ + 4
    dp = " row_mask:0xf bank_mask:0xf bound_ctrl:0"
    def vbody(wn):
        e("    s_set_gpr_idx_on s%d, gpr_idx(SRC0)" % sIDX)
        for u in range(U):
            e("    v_fma_f32 v%d, v%d, s%d, -v%d" % (vP + u, vS + u, sC, vM))
        e("    s_set_gpr_idx_off")
        for u in range(U):
            e("    v_exp_f32 v%d, v%d" % (vP + u, vP + u))
        if U < 2:
            e("    s_nop 0")
        for u in range(U):
            e("    v_cvt_pk_bf16_f32 v%d, v%d, v%d" % (vT, vP + u, vP + u))
            e("    v_add_f32 v%d, v%d, v%d" % (vL, vL, vP + u))
            e("    v_and_b32 v%d, v%d, v%d" % (BA + 0, vT, vMASK + 0))
            e("    v_and_b32 v%d, v%d, v%d" % (BA + 1, vT, vMASK + 1))
            e("    v_and_b32_dpp v%d, v%d, v%d row_shr:4%s" % (BA + 2, vT, vMASK + 2, dp))
            e("    v_and_b32_dpp v%d, v%d, v%d row_shr:4%s" % (BA + 3, vT, vMASK + 3, dp))
            e("    v_and_b32_dpp v%d, v%d, v%d row_shl:4%s" % (BB + 0, vT, vMASK + 0, dp))
            e("    v_and_b32_dpp v%d, v%d, v%d row_shl:4%s" % (BB + 1, vT, vMASK + 1, dp))
            e("    v_and_b32 v%d, v%d, v%d" % (BB + 2, vT, vMASK + 2))
            e("    v_and_b32 v%d, v%d, v%d" % (BB + 3, vT, vMASK + 3))
            for t in range(4):
                i = 4 * u + t
                e("    s_waitcnt vmcnt(%d)" % (wn[i] - 1))
                acc = X if t < 2 else Y
                b = BA if t % 2 == 0 else BB
                e("    v_mfma_f32_16x16x32_bf16 v[%d:%d], %s, v[%d:%d], v[%d:%d]" % (acc, acc + 3, buf(i), b, b + 3, acc, acc + 3))
                load(i)
            adv()
    SH = max(0, (4 * NIT).bit_length() - 1 - 6)
    def control():
        if stamp == 3:
            e("    s_memrealtime s[60:61]")
            e("    s_lshr_b32 m0, s%d, %d" % (sTOT, SH))
            e("    s_waitcnt lgkmcnt(0)")
            e("    v_writelane_b32 v%d, s60, m0" % vST)
        if stamp == 3 or E:
            e("    s_add_u32 s%d, s%d, 1" % (sTOT, sTOT))
        e("    s_add_u32 s%d, s%d, 1" % (sIT, sIT))
        e("    s_add_u32 s%d, s%d, %d" % (sIDX, sIDX, U))
    e("L_k:")
    kbody(wn)
    control()
    e("    s_cmp_lt_u32 s%d, %d" % (sIT, NIT - 1))
    e("    s_cbranch_scc1 L_k")
    e("    s_cmp_eq_u32 s%d, %d" % (sIT, NIT))
    e("    s_cbranch_scc1 L_kdone")
    e("    s_mov_b32 s%d, s28" % sS)
    e("    s_mov_b32 s%d, s29" % (sS + 1))
    e("    s_mov_b32 s%d, s%d" % (sOFF, sOFF0))
    e("    v_lshlrev_b32 v%d, 4, v%d" % (vOFF, vLANE))
    e("    s_branch L_k")
    e("L_kdone:")
    e("    v_max_f32_dpp v%d, v%d, v%d row_ror:4 row_mask:0xf bank_mask:0xf" % (vM, vM, vM))
    e("    s_mov_b32 s%d, 0" % sIDX)
    e("    v_mov_b32 v%d, 0" % vL)
    e("    v_max_f32_dpp v%d, v%d, v%d row_ror:8 row_mask:0xf bank_mask:0xf" % (vM, vM, vM))
    e("    v_mov_b32 v%d, 0" % (vACC + 0))
    e("    v_mov_b32 v%d, v%d" % (vT, vM))
    e("    v_mov_b32 v%d, 0" % (vACC + 1))
    e("    v_mov_b32 v%d, 0" % (vACC + 2))
    e("    v_permlane16_swap_b32 v%d, v%d" % (vT, vM))
    e("    v_mov_b32 v%d, 0" % (vACC + 3))
    e("    v_mov_b32 v%d, 0" % (vACC + 4))
    e("    v_max_f32 v%d, v%d, v%d" % (vM, vM, vT))
    e("    v_mov_b32 v%d, v%d" % (vT, vM))
    e("    v_mov_b32 v%d, 0" % (vACC + 5))
    e("    v_mov_b32 v%d, 0" % (vACC + 6))
    e("    v_permlane32_swap_b32 v%d, v%d" % (vT, vM))
    e("    v_mov_b32 v%d, 0" % (vACC + 7))
    e("    s_mov_b32 s%d, 0" % sIT)
    e("    v_max_f32 v%d, v%d, v%d" % (vM, vM, vT))
    e("    v_mul_f32 v%d, s%d, v%d" % (vM, sC, vM))
    e("L_v:")
    if E:
        e("    s_cmp_ge_u32 s%d, %d" % (sTOT, 4 * NIT - 1 - E))
        e("    s_cbranch_scc1 L_vhi")
        vbody(wn)
        e("    s_branch L_vtail")
        e("L_vhi:")
        vbody([hi] * R)
        e("L_vtail:")
    else:
        vbody(wn)
    control()
    e("    s_cmp_lt_u32 s%d, %d" % (sIT, NIT - 1))
    e("    s_cbranch_scc1 L_v")
    e("    s_cmp_eq_u32 s%d, %d" % (sIT, NIT))
    e("    s_cbranch_scc1 L_vdone")
    e("    s_mov_b32 s%d, s%d" % (sS, sKB))
    e("    s_mov_b32 s%d, s%d" % (sS + 1, sKB + 1))
    e("    s_mov_b32 s%d, s%d" % (sS + 2, sNR))
    e("    s_mov_b32 s%d, s%d" % (sOFF, sOFF0))
    e("    v_mov_b32 v%d, v%d" % (vOFF, vKOFF))
    e("    s_branch L_v")
    e("L_vdone:")
    e("    v_add_f32_dpp v%d, v%d, v%d row_ror:4 row_mask:0xf bank_mask:0xf" % (vL, vL, vL))
    e("    v_lshrrev_b32 v%d, 4, v%d" % (vX, vLANE))
    e("    v_and_b32 v%d, 7, v%d" % (vT2, vLANE))
    e("    v_add_f32_dpp v%d, v%d, v%d row_ror:8 row_mask:0xf bank_mask:0xf" % (vL, vL, vL))
    e("    v_lshlrev_b32 v%d, %d, v%d" % (vX, 6 if W == 1 else 7, vX))
    e("    v_mov_b32 v%d, v%d" % (vT, vL))
    e("    v_lshl_add_u32 v%d, v%d, %d, v%d" % (vX, vT2, 1 if W == 1 else 2, vX))
    e("    s_nop 0")
    e("    v_permlane16_swap_b32 v%d, v%d" % (vT, vL))
    e("    v_add_f32_dpp v%d, v%d, v%d row_ror:8 row_mask:0xf bank_mask:0xf" % (X + 0, Y + 0, X + 0))
    e("    v_add_f32_dpp v%d, v%d, v%d row_ror:8 row_mask:0xf bank_mask:0xf" % (X + 1, Y + 1, X + 1))
    e("    v_add_f32 v%d, v%d, v%d" % (vL, vL, vT))
    e("    v_mov_b32 v%d, v%d" % (vT, vL))
    e("    v_add_f32_dpp v%d, v%d, v%d row_ror:8 row_mask:0xf bank_mask:0xf" % (X + 2, Y + 2, X + 2))
    e("    v_add_f32_dpp v%d, v%d, v%d row_ror:8 row_mask:0xf bank_mask:0xf" % (X + 3, Y + 3, X + 3))
    e("    v_permlane32_swap_b32 v%d, v%d" % (vT, vL))
    e("    s_nop 1")
    e("    v_add_f32 v%d, v%d, v%d" % (vL, vL, vT))
    if W == 1:
        e("    v_rcp_f32 v%d, v%d" % (vL, vL))
        e("    s_cmp_lg_u32 s%d, 0" % sHD)
        for v in range(4):
            e("    v_mul_f32 v%d, v%d, v%d" % (X + v, X + v, vL))
        e("    s_cbranch_scc1 L_fin")
        e("    v_cvt_pk_bf16_f32 v%d, v%d, v%d" % (vR0, X + 0, X + 1))
        e("    v_cvt_pk_bf16_f32 v%d, v%d, v%d" % (vR1, X + 2, X + 3))
    else:
        e("    s_mul_i32 s%d, s%d, %d" % (sT, sHD, W))
        e("    s_add_u32 s%d, s%d, s%d" % (sT, sT, sW))
        e("    s_lshl_b32 s35, s%d, 9" % sT)
        e("    s_lshl_b32 s%d, s%d, 3" % (sT, sT))
        e("    v_add_u32 v%d, s35, v%d" % (vX, vX))
        e("    v_mov_b32 v%d, s%d" % (vT2, sT))
        e("    s_mov_b32 exec_lo, 0x00ff00ff")
        e("    s_mov_b32 exec_hi, 0x00ff00ff")
        for v in range(4):
            e("    ds_write_b32 v%d, v%d offset:%d" % (vX, X + v, PO + 32 * v))
        assert vL == vM + 1
        e("    ds_write_b64 v%d, v[%d:%d] offset:%d" % (vT2, vM, vL, PM))
        e("    s_mov_b64 exec, -1")
        e("    s_cmp_lg_u32 s%d, 0" % sHD)
        e("    s_cbranch_scc1 L_fin")
    stampit(2)
    e("    s_mov_b32 s%d, 1" % sHD)
    e("    s_mov_b32 s%d, 0" % sNR)
    e("    s_add_u32 s28, s28, 0x%x" % ((dH * HEAD_BYTES) & 0xffffffff))
    e("    s_addc_u32 s29, s29, 0")
    for w in range(4):
        e("    v_mov_b32 v%d, v%d" % (vACC + w, vQB + w))
    e("    s_branch L_head")
    e("L_fin:")
    stampit(3)
    if W == 1:
        e("    v_cvt_pk_bf16_f32 v%d, v%d, v%d" % (X + 0, X + 0, X + 1))
        e("    v_cvt_pk_bf16_f32 v%d, v%d, v%d" % (X + 1, X + 2, X + 3))
        e("    s_mov_b32 exec_lo, 0x00ff00ff")
        e("    s_mov_b32 exec_hi, 0x00ff00ff")
        for (r0, so) in ((X, "s34"), (vR0, "s3")):
            e("    buffer_store_short v%d, v%d, s[%d:%d], %s offen offset:0" % (r0, vX, sO, sO + 3, so))
            e("    buffer_store_short_d16_hi v%d, v%d, s[%d:%d], %s offen offset:16" % (r0, vX, sO, sO + 3, so))
            e("    buffer_store_short v%d, v%d, s[%d:%d], %s offen offset:32" % (r0 + 1, vX, sO, sO + 3, so))
            e("    buffer_store_short_d16_hi v%d, v%d, s[%d:%d], %s offen offset:48" % (r0 + 1, vX, sO, sO + 3, so))
    else:
        e("    s_waitcnt lgkmcnt(0)")
        e("    s_barrier")
        e("    s_cmp_gt_u32 s%d, 1" % sW)
        e("    s_cbranch_scc1 L_done")
        Rr = (vS + 1) // 2 * 2
        e("    s_mul_i32 s%d, s%d, %d" % (sT, sW, W * 8))
        e("    s_mul_i32 s35, s%d, %d" % (sW, W * 512))
        e("    v_mov_b32 v%d, s%d" % (vT, sT))
        e("    v_lshl_add_u32 v%d, v%d, 3, s35" % (vX, vLANE))
        for w in range(0, W, 2):
            e("    ds_read_b128 v[%d:%d], v%d offset:%d" % (Rr + 2 * w, Rr + 2 * w + 3, vT, PM + 8 * w))
        for w in range(W):
            e("    ds_read_b64 v[%d:%d], v%d offset:%d" % (Rr + 2 * W + 2 * w, Rr + 2 * W + 2 * w + 1, vX, PO + 512 * w))
        e("    s_cmp_eq_u32 s%d, 0" % sW)
        e("    s_cselect_b32 s3, s3, s34")
        e("    s_waitcnt lgkmcnt(%d)" % W)
        e("    v_max_f32 v%d, v%d, v%d" % (vM, Rr, Rr + 2))
        for w in range(2, W, 2):
            e("    v_max3_f32 v%d, v%d, v%d, v%d" % (vM, vM, Rr + 2 * w, Rr + 2 * w + 2))
        for w in range(W):
            e("    v_sub_f32 v%d, v%d, v%d" % (Rr + 2 * w, Rr + 2 * w, vM))
        for w in range(W):
            e("    v_exp_f32 v%d, v%d" % (Rr + 2 * w, Rr + 2 * w))
        e("    s_nop 0")
        e("    v_mul_f32 v%d, v%d, v%d" % (vL, Rr, Rr + 1))
        for w in range(1, W):
            e("    v_fmac_f32 v%d, v%d, v%d" % (vL, Rr + 2 * w, Rr + 2 * w + 1))
        e("    v_rcp_f32 v%d, v%d" % (vL, vL))
        e("    s_waitcnt lgkmcnt(0)")
        O = Rr + 2 * W
        e("    v_mul_f32 v%d, v%d, v%d" % (X, Rr, O))
        e("    v_mul_f32 v%d, v%d, v%d" % (X + 1, Rr, O + 1))
        for w in range(1, W):
            e("    v_fmac_f32 v%d, v%d, v%d" % (X, Rr + 2 * w, O + 2 * w))
            e("    v_fmac_f32 v%d, v%d, v%d" % (X + 1, Rr + 2 * w, O + 2 * w + 1))
        e("    v_mul_f32 v%d, v%d, v%d" % (X, X, vL))
        e("    v_mul_f32 v%d, v%d, v%d" % (X + 1, X + 1, vL))
        e("    v_lshlrev_b32 v%d, 2, v%d" % (vX, vLANE))
        e("    v_cvt_pk_bf16_f32 v%d, v%d, v%d" % (X, X, X + 1))
        e("    buffer_store_dword v%d, v%d, s[%d:%d], s3 offen" % (X, vX, sO, sO + 3))
        if stamp:
            e("    s_cmp_lg_u32 s%d, 0" % sW)
            e("    s_cbranch_scc1 L_done")
    if stamp:
        Rr = vQ
        stampit(4)
        e("    s_getreg_b32 s40, hwreg(HW_REG_XCC_ID)")
        e("    s_getreg_b32 s41, hwreg(HW_REG_HW_ID)")
        e("    s_waitcnt lgkmcnt(0)")
        for k, s in enumerate((44, 52, 40, 41, 46, 48, 50, 50)):
            e("    v_mov_b32 v%d, s%d" % (Rr + k, s))
        e("    s_lshl_b32 s3, s2, 4")
        e("    v_mov_b32 v%d, s3" % vT)
        e("    s_mov_b64 exec, 1")
        e("    global_store_dwordx4 v%d, v[%d:%d], s[58:59]" % (vT, Rr, Rr + 3))
        e("    v_add_u32 v%d, 0x10000, v%d" % (vT, vT))
        e("    global_store_dwordx4 v%d, v[%d:%d], s[58:59]" % (vT, Rr + 4, Rr + 7))
    if stamp == 3:
        e("    s_mov_b64 exec, -1")
        e("    s_lshl_b32 s3, s2, 8")
        e("    v_lshl_add_u32 v%d, v%d, 2, s3" % (vT, vLANE))
        e("    v_add_u32 v%d, 0x20000, v%d" % (vT, vT))
        e("    global_store_dword v%d, v%d, s[58:59]" % (vT, vST))
    e("L_done:")
    e("    s_endpgm")
    e('.section .rodata,"a"')
    e(".p2align 6")
    e(".amdhsa_kernel %s_kernel" % NAME)
    e("  .amdhsa_next_free_vgpr %d" % (ACC0 + 4 * R))
    e("  .amdhsa_next_free_sgpr 64")
    e("  .amdhsa_accum_offset %d" % ACC0)
    e("  .amdhsa_group_segment_fixed_size 0")
    e("  .amdhsa_kernarg_size 48")
    e("  .amdhsa_user_sgpr_count 2")
    e("  .amdhsa_user_sgpr_kernarg_segment_ptr 1")
    e("  .amdhsa_system_sgpr_workgroup_id_x 1")
    e(".end_amdhsa_kernel")
    return "\n".join(o) + "\n"

if __name__ == "__main__":
    ap = argparse.ArgumentParser()
    ap.add_argument("-o", default="/dev/stdout")
    for k, d in (("W", 2), ("R", 16), ("hi", 0), ("E", 0), ("lds", 90000), ("stamp", 0), ("pair", 0), ("I0", 0), ("perm", 0), ("BL", 1), ("SB", 12), ("rot", 0)):
        ap.add_argument("--" + k, type=int, default=d)
    ap.add_argument("--flags", default="nt")
    ap.add_argument("--win", default="a")
    a = vars(ap.parse_args())
    out = a.pop("o")
    open(out, "w").write(gen(**a))
```

```python
import argparse, math, struct

NAME = "standalone__softmax_full_bidir__sampling"
HEADS = 512
HEAD_BYTES = 2048 * 256

def f32bits(x):
    return struct.unpack("<I", struct.pack("<f", x))[0]

def gen(W=2, R=16, win="a", hi=0, E=0, flags="nt", lds=0, stamp=0, pair=0, I0=0, perm=0, BL=1, SB=12, rot=0, tab=0):
    U = R // 4
    G = 128 // W
    NIT = G // U
    assert G % U == 0 and NIT >= 2
    wn = [int(x, 36) for x in win]
    while len(wn) < R:
        wn = wn + wn
    wn = wn[:R]
    assert max(wn) <= R
    hi = hi or R
    NWG = HEADS // 2
    PO = 0
    PM = 2 * W * 512
    ldsz = max(lds, PM + 2 * W * 8 if W > 1 else 0)
    o = []
    e = o.append
    hdr = open("cdna_kernels/%s.s.ref" % NAME).read().split("\n")
    for l in hdr:
        if l.startswith("; @launch"):
            e("; @launch grid=(%d,1,1) block=(%d,1,1) lds=%d" % (NWG, 64 * W, ldsz))
        elif l.startswith(";"):
            e(l)
        else:
            break
    e('.amdgcn_target "amdgcn-amd-amdhsa--gfx950"')
    e(".text")
    e(".globl %s_kernel" % NAME)
    e(".p2align 8")
    e(".type %s_kernel,@function" % NAME)
    e("%s_kernel:" % NAME)
    vLANE = 0; vOFF = 1; vT = 2; vX = 3; vM = 4; vL = 5; vT2 = 6; vST = 7
    vMASK = 8
    vQ = 12
    vACC = 28
    vQB = 36
    vKOFF = 40; vBANK = 41; vR0 = 42; vR1 = 43
    vP = 44
    vS = vP + U
    vEND = max(vS + G, vS + 4 * W + 4)
    ACC0 = (vEND + 3) // 4 * 4
    def buf(i):
        b = 4 * (i % R)
        return "a[%d:%d]" % (b, b + 3)
    sS = 8; sQ = 16; sO = 20; sOFF = 24; sW = 25; sC = 26; sOFF0 = 27
    sIT = 36; sIDX = 37; sHD = 38; sNR = 39; sT = 40; sTOT = 41
    sKB = 30
    c = (128 ** -0.5) * math.log2(math.e)
    fl = (" " + flags) if flags else ""
    step = 4096 * W
    def stampit(k):
        if stamp:
            e("    s_memrealtime s[%d:%d]" % (44 + 2 * k, 45 + 2 * k))
    e("    s_cmp_ge_u32 s2, %d" % NWG)
    e("    s_cbranch_scc1 L_done")
    e("    s_load_dwordx4 s[4:7], s[0:1], 0")
    e("    s_load_dwordx4 s[12:15], s[0:1], 16")
    if stamp:
        e("    s_load_dwordx2 s[58:59], s[0:1], 40")
    stampit(0)
    if W > 1:
        e("    v_lshrrev_b32 v%d, 6, v0" % vT)
        e("    v_and_b32 v0, 63, v0")
        e("    v_readfirstlane_b32 s%d, v%d" % (sW, vT))
    e("    v_and_b32 v%d, 3, v%d" % (vX, vLANE))
    e("    v_lshrrev_b32 v%d, 4, v%d" % (vT, vLANE))
    e("    v_lshlrev_b32 v%d, 6, v%d" % (vT, vT))
    e("    v_lshl_add_u32 v%d, v%d, 4, v%d" % (vX, vX, vT))
    e("    v_bfe_u32 v%d, v%d, 2, 2" % (vBANK, vLANE))
    e("    v_lshl_add_u32 v%d, v%d, 8, v%d" % (vOFF, vBANK, vX))
    if tab:
        e("    s_waitcnt lgkmcnt(0)")
        e("    s_lshl_b32 s33, s2, 4")
        e("    s_add_u32 s33, s33, 0x100000")
        e("    s_load_dwordx4 s[64:67], s[58:59], s33")
        e("    s_waitcnt lgkmcnt(0)")
        dH = 0
        e("    s_mov_b32 s33, s64")
    elif pair == 0:
        dH = 256
        e("    s_mov_b32 s33, s2")
    else:
        dH = 1
        e("    s_lshl_b32 s33, s2, 1")
    e("    s_lshl_b32 s32, s33, 19")
    e("    s_lshl_b32 s3, s33, 8")
    e("    s_lshr_b32 s33, s33, 13")
    if W > 1:
        e("    s_lshl_b32 s%d, s%d, %d" % (sOFF, sW, SB))
    else:
        e("    s_mov_b32 s%d, 0" % sOFF)
    if tab:
        e("    s_add_u32 s67, s67, s%d" % sOFF)
        e("    s_add_u32 s%d, s%d, s66" % (sOFF, sOFF))
        rot = 1
    elif rot:
        e("    s_mul_i32 s43, s2, %d" % (rot * step))
        e("    s_add_u32 s%d, s%d, s43" % (sOFF, sOFF))
        e("    s_and_b32 s%d, s%d, %d" % (sOFF, sOFF, HEAD_BYTES - 1))
    sSTR = 42
    if perm == 1:
        e("    s_lshr_b32 s%d, s2, 3" % sSTR)
    elif perm == 2:
        e("    s_mov_b32 s%d, s2" % sSTR)
    elif perm == 3:
        e("    s_mul_i32 s%d, s2, 0x9E3779B1" % sSTR)
        e("    s_lshr_b32 s%d, s%d, 16" % (sSTR, sSTR))
    elif perm >= 4:
        e("    s_mov_b32 s%d, %d" % (sSTR, perm // 2))
    if perm:
        e("    s_lshl_b32 s%d, s%d, 1" % (sSTR, sSTR))
        e("    s_mul_i32 s%d, s%d, %d" % (sSTR, sSTR, step * BL))
        e("    s_add_u32 s%d, s%d, %d" % (sSTR, sSTR, step))
    cnt = [0]
    def adv():
        cnt[0] += 1
        if SB > 12:
            e("    s_add_u32 s%d, s%d, 4096" % (sOFF, sOFF))
            e("    s_and_b32 s43, s%d, %d" % (sOFF, (1 << SB) - 1))
            e("    s_cselect_b32 s43, 0, %d" % ((W - 1) << SB))
            e("    s_add_u32 s%d, s%d, s43" % (sOFF, sOFF))
            return
        if rot:
            e("    s_add_u32 s%d, s%d, %d" % (sOFF, sOFF, step))
            e("    s_and_b32 s%d, s%d, %d" % (sOFF, sOFF, HEAD_BYTES - 1))
            return
        if perm and cnt[0] % BL == 0:
            e("    s_add_u32 s%d, s%d, s%d" % (sOFF, sOFF, sSTR))
            e("    s_and_b32 s%d, s%d, %d" % (sOFF, sOFF, HEAD_BYTES - 1))
        else:
            e("    s_add_u32 s%d, s%d, %d" % (sOFF, sOFF, step))
    e("    s_mov_b32 s%d, %d" % (sS + 2, HEAD_BYTES))
    e("    s_mov_b32 s%d, 0x20000" % (sS + 3))
    e("    s_mov_b32 s%d, %d" % (sQ + 2, HEADS * 256))
    e("    s_mov_b32 s%d, 0x20000" % (sQ + 3))
    e("    s_waitcnt lgkmcnt(0)")
    e("    s_mov_b32 s%d, s4" % sQ)
    e("    s_mov_b32 s%d, s5" % (sQ + 1))
    e("    s_add_u32 s%d, s6, s32" % sS)
    e("    s_addc_u32 s%d, s7, s33" % (sS + 1))
    e("    buffer_load_dwordx4 v[%d:%d], v%d, s[%d:%d], s3 offen" % (vACC, vACC + 3, vX, sQ, sQ + 3))
    def load(i):
        e("    buffer_load_dwordx4 %s, v%d, s[%d:%d], s%d offen offset:%d%s" % (buf(i), vOFF, sS, sS + 3, sOFF, (i % 4) * 1024, fl))
    e("    s_mov_b32 s%d, s%d" % (sOFF0, sOFF))
    for i in range(R):
        if I0 and i >= I0:
            e("    s_waitcnt vmcnt(%d)" % (I0 - 1))
        load(i)
        if i % 4 == 3:
            adv()
    if tab:
        e("    s_lshl_b32 s34, s65, 8")
    else:
        e("    s_add_u32 s34, s3, %d" % (dH * 256))
    e("    buffer_load_dwordx4 v[%d:%d], v%d, s[%d:%d], s34 offen" % (vQB, vQB + 3, vX, sQ, sQ + 3))
    e("    s_add_u32 s28, s12, s32")
    e("    s_addc_u32 s29, s13, s33")
    if tab:
        e("    s_lshl_b32 s68, s65, 19")
        e("    s_lshr_b32 s69, s65, 13")
        e("    s_add_u32 s%d, s6, s68" % sKB)
        e("    s_addc_u32 s%d, s7, s69" % (sKB + 1))
        e("    s_add_u32 s68, s12, s68")
        e("    s_addc_u32 s69, s13, s69")
    else:
        e("    s_add_u32 s%d, s%d, 0x%x" % (sKB, sS, (dH * HEAD_BYTES) & 0xffffffff))
        e("    s_addc_u32 s%d, s%d, 0" % (sKB + 1, sS + 1))
    e("    s_mov_b32 s%d, s14" % sO)
    e("    s_mov_b32 s%d, s15" % (sO + 1))
    e("    s_mov_b32 s%d, %d" % (sO + 2, HEADS * 256))
    e("    s_mov_b32 s%d, 0x20000" % (sO + 3))
    e("    s_mov_b32 s%d, 0x%08x" % (sC, f32bits(c)))
    e("    s_mov_b32 s%d, 0" % sHD)
    e("    s_mov_b32 s%d, %d" % (sNR, HEAD_BYTES))
    e("    s_mov_b32 s%d, 0" % sTOT)
    e("    v_mov_b32 v%d, v%d" % (vKOFF, vOFF))
    e("    v_and_b32 v%d, 1, v%d" % (vT, vLANE))
    e("    v_lshlrev_b32 v%d, 4, v%d" % (vT, vT))
    e("    v_mov_b32 v%d, 0xffff" % vL)
    e("    v_lshlrev_b32 v%d, v%d, v%d" % (vL, vT, vL))
    e("    v_bfe_u32 v%d, v%d, 1, 2" % (vT, vLANE))
    for w in range(4):
        e("    v_cmp_eq_u32 vcc, %d, v%d" % (w, vT))
        e("    s_nop 1")
        e("    v_cndmask_b32 v%d, 0, v%d, vcc" % (vMASK + w, vL))
    e("    s_waitcnt vmcnt(%d)" % min(R + 1, 63))
    if stamp:
        e("    s_waitcnt vmcnt(%d)" % R)
        stampit(1)
    e("L_head:")
    for t in range(4):
        e("    v_cmp_eq_u32 vcc, %d, v%d" % (t, vBANK))
        e("    s_nop 1")
        for w in range(4):
            e("    v_cndmask_b32 v%d, 0, v%d, vcc" % (vQ + 4 * t + w, vACC + w))
    e("    v_mov_b32 v%d, 0xff800000" % vM)
    e("    s_mov_b32 s%d, 0" % sIT)
    e("    s_mov_b32 s%d, 0" % sIDX)
    def diag(u):
        a = vACC
        qp = lambda k: "quad_perm:[%d,%d,%d,%d] row_mask:0xf bank_mask:0xf" % (k, k, k, k)
        e("    v_mov_b32_dpp v%d, v%d %s" % (vT, a, qp(0)))
        e("    v_mov_b32_dpp v%d, v%d %s" % (vT2, a + 1, qp(1)))
        e("    s_nop 0")
        e("    v_add_f32_dpp v%d, v%d, v%d %s" % (vT, a + 2, vT, qp(2)))
        e("    v_add_f32_dpp v%d, v%d, v%d %s" % (vT2, a + 3, vT2, qp(3)))
        e("    v_add_f32 v%d, v%d, v%d" % (vX, vT, vT2))
        e("    s_set_gpr_idx_on s%d, gpr_idx(DST)" % sIDX)
        e("    v_mov_b32 v%d, v%d" % (vS + u, vX))
        e("    s_set_gpr_idx_off")
        e("    v_max_f32 v%d, v%d, v%d" % (vM, vM, vX))
    def kbody(wn):
        for u in range(U):
            for t in range(4):
                i = 4 * u + t
                e("    s_waitcnt vmcnt(%d)" % (wn[i] - 1))
                e("    v_mfma_f32_16x16x32_bf16 v[%d:%d], %s, v[%d:%d], %s" % (vACC, vACC + 3, buf(i), vQ + 4 * t, vQ + 4 * t + 3, "0" if t == 0 else "v[%d:%d]" % (vACC, vACC + 3)))
                load(i)
            adv()
            e("    s_nop 5")
            diag(u)
    X = vACC; Y = vACC + 4; BA = vQ; BB = vQ + 4
    dp = " row_mask:0xf bank_mask:0xf bound_ctrl:0"
    def vbody(wn):
        e("    s_set_gpr_idx_on s%d, gpr_idx(SRC0)" % sIDX)
        for u in range(U):
            e("    v_fma_f32 v%d, v%d, s%d, -v%d" % (vP + u, vS + u, sC, vM))
        e("    s_set_gpr_idx_off")
        for u in range(U):
            e("    v_exp_f32 v%d, v%d" % (vP + u, vP + u))
        if U < 2:
            e("    s_nop 0")
        for u in range(U):
            e("    v_cvt_pk_bf16_f32 v%d, v%d, v%d" % (vT, vP + u, vP + u))
            e("    v_add_f32 v%d, v%d, v%d" % (vL, vL, vP + u))
            e("    v_and_b32 v%d, v%d, v%d" % (BA + 0, vT, vMASK + 0))
            e("    v_and_b32 v%d, v%d, v%d" % (BA + 1, vT, vMASK + 1))
            e("    v_and_b32_dpp v%d, v%d, v%d row_shr:4%s" % (BA + 2, vT, vMASK + 2, dp))
            e("    v_and_b32_dpp v%d, v%d, v%d row_shr:4%s" % (BA + 3, vT, vMASK + 3, dp))
            e("    v_and_b32_dpp v%d, v%d, v%d row_shl:4%s" % (BB + 0, vT, vMASK + 0, dp))
            e("    v_and_b32_dpp v%d, v%d, v%d row_shl:4%s" % (BB + 1, vT, vMASK + 1, dp))
            e("    v_and_b32 v%d, v%d, v%d" % (BB + 2, vT, vMASK + 2))
            e("    v_and_b32 v%d, v%d, v%d" % (BB + 3, vT, vMASK + 3))
            for t in range(4):
                i = 4 * u + t
                e("    s_waitcnt vmcnt(%d)" % (wn[i] - 1))
                acc = X if t < 2 else Y
                b = BA if t % 2 == 0 else BB
                e("    v_mfma_f32_16x16x32_bf16 v[%d:%d], %s, v[%d:%d], v[%d:%d]" % (acc, acc + 3, buf(i), b, b + 3, acc, acc + 3))
                load(i)
            adv()
    SH = max(0, (4 * NIT).bit_length() - 1 - 6)
    def control():
        if stamp == 3:
            e("    s_memrealtime s[60:61]")
            e("    s_lshr_b32 m0, s%d, %d" % (sTOT, SH))
            e("    s_waitcnt lgkmcnt(0)")
            e("    v_writelane_b32 v%d, s60, m0" % vST)
        if stamp == 3 or E:
            e("    s_add_u32 s%d, s%d, 1" % (sTOT, sTOT))
        e("    s_add_u32 s%d, s%d, 1" % (sIT, sIT))
        e("    s_add_u32 s%d, s%d, %d" % (sIDX, sIDX, U))
    e("L_k:")
    kbody(wn)
    control()
    e("    s_cmp_lt_u32 s%d, %d" % (sIT, NIT - 1))
    e("    s_cbranch_scc1 L_k")
    e("    s_cmp_eq_u32 s%d, %d" % (sIT, NIT))
    e("    s_cbranch_scc1 L_kdone")
    e("    s_mov_b32 s%d, s28" % sS)
    e("    s_mov_b32 s%d, s29" % (sS + 1))
    e("    s_mov_b32 s%d, s%d" % (sOFF, sOFF0))
    e("    v_lshlrev_b32 v%d, 4, v%d" % (vOFF, vLANE))
    e("    s_branch L_k")
    e("L_kdone:")
    e("    v_max_f32_dpp v%d, v%d, v%d row_ror:4 row_mask:0xf bank_mask:0xf" % (vM, vM, vM))
    e("    s_mov_b32 s%d, 0" % sIDX)
    e("    v_mov_b32 v%d, 0" % vL)
    e("    v_max_f32_dpp v%d, v%d, v%d row_ror:8 row_mask:0xf bank_mask:0xf" % (vM, vM, vM))
    e("    v_mov_b32 v%d, 0" % (vACC + 0))
    e("    v_mov_b32 v%d, v%d" % (vT, vM))
    e("    v_mov_b32 v%d, 0" % (vACC + 1))
    e("    v_mov_b32 v%d, 0" % (vACC + 2))
    e("    v_permlane16_swap_b32 v%d, v%d" % (vT, vM))
    e("    v_mov_b32 v%d, 0" % (vACC + 3))
    e("    v_mov_b32 v%d, 0" % (vACC + 4))
    e("    v_max_f32 v%d, v%d, v%d" % (vM, vM, vT))
    e("    v_mov_b32 v%d, v%d" % (vT, vM))
    e("    v_mov_b32 v%d, 0" % (vACC + 5))
    e("    v_mov_b32 v%d, 0" % (vACC + 6))
    e("    v_permlane32_swap_b32 v%d, v%d" % (vT, vM))
    e("    v_mov_b32 v%d, 0" % (vACC + 7))
    e("    s_mov_b32 s%d, 0" % sIT)
    e("    v_max_f32 v%d, v%d, v%d" % (vM, vM, vT))
    e("    v_mul_f32 v%d, s%d, v%d" % (vM, sC, vM))
    e("L_v:")
    if E:
        e("    s_cmp_ge_u32 s%d, %d" % (sTOT, 4 * NIT - 1 - E))
        e("    s_cbranch_scc1 L_vhi")
        vbody(wn)
        e("    s_branch L_vtail")
        e("L_vhi:")
        vbody([hi] * R)
        e("L_vtail:")
    else:
        vbody(wn)
    control()
    e("    s_cmp_lt_u32 s%d, %d" % (sIT, NIT - 1))
    e("    s_cbranch_scc1 L_v")
    e("    s_cmp_eq_u32 s%d, %d" % (sIT, NIT))
    e("    s_cbranch_scc1 L_vdone")
    e("    s_mov_b32 s%d, s%d" % (sS, sKB))
    e("    s_mov_b32 s%d, s%d" % (sS + 1, sKB + 1))
    e("    s_mov_b32 s%d, s%d" % (sS + 2, sNR))
    if tab:
        e("    s_mov_b32 s%d, s67" % sOFF0)
    e("    s_mov_b32 s%d, s%d" % (sOFF, sOFF0))
    e("    v_mov_b32 v%d, v%d" % (vOFF, vKOFF))
    e("    s_branch L_v")
    e("L_vdone:")
    e("    v_add_f32_dpp v%d, v%d, v%d row_ror:4 row_mask:0xf bank_mask:0xf" % (vL, vL, vL))
    e("    v_lshrrev_b32 v%d, 4, v%d" % (vX, vLANE))
    e("    v_and_b32 v%d, 7, v%d" % (vT2, vLANE))
    e("    v_add_f32_dpp v%d, v%d, v%d row_ror:8 row_mask:0xf bank_mask:0xf" % (vL, vL, vL))
    e("    v_lshlrev_b32 v%d, %d, v%d" % (vX, 6 if W == 1 else 7, vX))
    e("    v_mov_b32 v%d, v%d" % (vT, vL))
    e("    v_lshl_add_u32 v%d, v%d, %d, v%d" % (vX, vT2, 1 if W == 1 else 2, vX))
    e("    s_nop 0")
    e("    v_permlane16_swap_b32 v%d, v%d" % (vT, vL))
    e("    v_add_f32_dpp v%d, v%d, v%d row_ror:8 row_mask:0xf bank_mask:0xf" % (X + 0, Y + 0, X + 0))
    e("    v_add_f32_dpp v%d, v%d, v%d row_ror:8 row_mask:0xf bank_mask:0xf" % (X + 1, Y + 1, X + 1))
    e("    v_add_f32 v%d, v%d, v%d" % (vL, vL, vT))
    e("    v_mov_b32 v%d, v%d" % (vT, vL))
    e("    v_add_f32_dpp v%d, v%d, v%d row_ror:8 row_mask:0xf bank_mask:0xf" % (X + 2, Y + 2, X + 2))
    e("    v_add_f32_dpp v%d, v%d, v%d row_ror:8 row_mask:0xf bank_mask:0xf" % (X + 3, Y + 3, X + 3))
    e("    v_permlane32_swap_b32 v%d, v%d" % (vT, vL))
    e("    s_nop 1")
    e("    v_add_f32 v%d, v%d, v%d" % (vL, vL, vT))
    if W == 1:
        e("    v_rcp_f32 v%d, v%d" % (vL, vL))
        e("    s_cmp_lg_u32 s%d, 0" % sHD)
        for v in range(4):
            e("    v_mul_f32 v%d, v%d, v%d" % (X + v, X + v, vL))
        e("    s_cbranch_scc1 L_fin")
        e("    v_cvt_pk_bf16_f32 v%d, v%d, v%d" % (vR0, X + 0, X + 1))
        e("    v_cvt_pk_bf16_f32 v%d, v%d, v%d" % (vR1, X + 2, X + 3))
    else:
        e("    s_mul_i32 s%d, s%d, %d" % (sT, sHD, W))
        e("    s_add_u32 s%d, s%d, s%d" % (sT, sT, sW))
        e("    s_lshl_b32 s35, s%d, 9" % sT)
        e("    s_lshl_b32 s%d, s%d, 3" % (sT, sT))
        e("    v_add_u32 v%d, s35, v%d" % (vX, vX))
        e("    v_mov_b32 v%d, s%d" % (vT2, sT))
        e("    s_mov_b32 exec_lo, 0x00ff00ff")
        e("    s_mov_b32 exec_hi, 0x00ff00ff")
        for v in range(4):
            e("    ds_write_b32 v%d, v%d offset:%d" % (vX, X + v, PO + 32 * v))
        assert vL == vM + 1
        e("    ds_write_b64 v%d, v[%d:%d] offset:%d" % (vT2, vM, vL, PM))
        e("    s_mov_b64 exec, -1")
        e("    s_cmp_lg_u32 s%d, 0" % sHD)
        e("    s_cbranch_scc1 L_fin")
    stampit(2)
    e("    s_mov_b32 s%d, 1" % sHD)
    e("    s_mov_b32 s%d, 0" % sNR)
    if tab:
        e("    s_mov_b32 s28, s68")
        e("    s_mov_b32 s29, s69")
    else:
        e("    s_add_u32 s28, s28, 0x%x" % ((dH * HEAD_BYTES) & 0xffffffff))
        e("    s_addc_u32 s29, s29, 0")
    for w in range(4):
        e("    v_mov_b32 v%d, v%d" % (vACC + w, vQB + w))
    e("    s_branch L_head")
    e("L_fin:")
    stampit(3)
    if W == 1:
        e("    v_cvt_pk_bf16_f32 v%d, v%d, v%d" % (X + 0, X + 0, X + 1))
        e("    v_cvt_pk_bf16_f32 v%d, v%d, v%d" % (X + 1, X + 2, X + 3))
        e("    s_mov_b32 exec_lo, 0x00ff00ff")
        e("    s_mov_b32 exec_hi, 0x00ff00ff")
        for (r0, so) in ((X, "s34"), (vR0, "s3")):
            e("    buffer_store_short v%d, v%d, s[%d:%d], %s offen offset:0" % (r0, vX, sO, sO + 3, so))
            e("    buffer_store_short_d16_hi v%d, v%d, s[%d:%d], %s offen offset:16" % (r0, vX, sO, sO + 3, so))
            e("    buffer_store_short v%d, v%d, s[%d:%d], %s offen offset:32" % (r0 + 1, vX, sO, sO + 3, so))
            e("    buffer_store_short_d16_hi v%d, v%d, s[%d:%d], %s offen offset:48" % (r0 + 1, vX, sO, sO + 3, so))
    else:
        e("    s_waitcnt lgkmcnt(0)")
        e("    s_barrier")
        e("    s_cmp_gt_u32 s%d, 1" % sW)
        e("    s_cbranch_scc1 L_done")
        Rr = (vS + 1) // 2 * 2
        e("    s_mul_i32 s%d, s%d, %d" % (sT, sW, W * 8))
        e("    s_mul_i32 s35, s%d, %d" % (sW, W * 512))
        e("    v_mov_b32 v%d, s%d" % (vT, sT))
        e("    v_lshl_add_u32 v%d, v%d, 3, s35" % (vX, vLANE))
        for w in range(0, W, 2):
            e("    ds_read_b128 v[%d:%d], v%d offset:%d" % (Rr + 2 * w, Rr + 2 * w + 3, vT, PM + 8 * w))
        for w in range(W):
            e("    ds_read_b64 v[%d:%d], v%d offset:%d" % (Rr + 2 * W + 2 * w, Rr + 2 * W + 2 * w + 1, vX, PO + 512 * w))
        e("    s_cmp_eq_u32 s%d, 0" % sW)
        e("    s_cselect_b32 s3, s3, s34")
        e("    s_waitcnt lgkmcnt(%d)" % W)
        e("    v_max_f32 v%d, v%d, v%d" % (vM, Rr, Rr + 2))
        for w in range(2, W, 2):
            e("    v_max3_f32 v%d, v%d, v%d, v%d" % (vM, vM, Rr + 2 * w, Rr + 2 * w + 2))
        for w in range(W):
            e("    v_sub_f32 v%d, v%d, v%d" % (Rr + 2 * w, Rr + 2 * w, vM))
        for w in range(W):
            e("    v_exp_f32 v%d, v%d" % (Rr + 2 * w, Rr + 2 * w))
        e("    s_nop 0")
        e("    v_mul_f32 v%d, v%d, v%d" % (vL, Rr, Rr + 1))
        for w in range(1, W):
            e("    v_fmac_f32 v%d, v%d, v%d" % (vL, Rr + 2 * w, Rr + 2 * w + 1))
        e("    v_rcp_f32 v%d, v%d" % (vL, vL))
        e("    s_waitcnt lgkmcnt(0)")
        O = Rr + 2 * W
        e("    v_mul_f32 v%d, v%d, v%d" % (X, Rr, O))
        e("    v_mul_f32 v%d, v%d, v%d" % (X + 1, Rr, O + 1))
        for w in range(1, W):
            e("    v_fmac_f32 v%d, v%d, v%d" % (X, Rr + 2 * w, O + 2 * w))
            e("    v_fmac_f32 v%d, v%d, v%d" % (X + 1, Rr + 2 * w, O + 2 * w + 1))
        e("    v_mul_f32 v%d, v%d, v%d" % (X, X, vL))
        e("    v_mul_f32 v%d, v%d, v%d" % (X + 1, X + 1, vL))
        e("    v_lshlrev_b32 v%d, 2, v%d" % (vX, vLANE))
        e("    v_cvt_pk_bf16_f32 v%d, v%d, v%d" % (X, X, X + 1))
        e("    buffer_store_dword v%d, v%d, s[%d:%d], s3 offen" % (X, vX, sO, sO + 3))
        if stamp:
            e("    s_cmp_lg_u32 s%d, 0" % sW)
            e("    s_cbranch_scc1 L_done")
    if stamp:
        Rr = vQ
        stampit(4)
        e("    s_getreg_b32 s40, hwreg(HW_REG_XCC_ID)")
        e("    s_getreg_b32 s41, hwreg(HW_REG_HW_ID)")
        e("    s_waitcnt lgkmcnt(0)")
        for k, s in enumerate((44, 52, 40, 41, 46, 48, 50, 50)):
            e("    v_mov_b32 v%d, s%d" % (Rr + k, s))
        e("    s_lshl_b32 s3, s2, 4")
        e("    v_mov_b32 v%d, s3" % vT)
        e("    s_mov_b64 exec, 1")
        e("    global_store_dwordx4 v%d, v[%d:%d], s[58:59]" % (vT, Rr, Rr + 3))
        e("    v_add_u32 v%d, 0x10000, v%d" % (vT, vT))
        e("    global_store_dwordx4 v%d, v[%d:%d], s[58:59]" % (vT, Rr + 4, Rr + 7))
    if stamp == 3:
        e("    s_mov_b64 exec, -1")
        e("    s_lshl_b32 s3, s2, 8")
        e("    v_lshl_add_u32 v%d, v%d, 2, s3" % (vT, vLANE))
        e("    v_add_u32 v%d, 0x20000, v%d" % (vT, vT))
        e("    global_store_dword v%d, v%d, s[58:59]" % (vT, vST))
    e("L_done:")
    e("    s_endpgm")
    e('.section .rodata,"a"')
    e(".p2align 6")
    e(".amdhsa_kernel %s_kernel" % NAME)
    e("  .amdhsa_next_free_vgpr %d" % (ACC0 + 4 * R))
    e("  .amdhsa_next_free_sgpr 72")
    e("  .amdhsa_accum_offset %d" % ACC0)
    e("  .amdhsa_group_segment_fixed_size 0")
    e("  .amdhsa_kernarg_size 48")
    e("  .amdhsa_user_sgpr_count 2")
    e("  .amdhsa_user_sgpr_kernarg_segment_ptr 1")
    e("  .amdhsa_system_sgpr_workgroup_id_x 1")
    e(".end_amdhsa_kernel")
    return "\n".join(o) + "\n"

if __name__ == "__main__":
    ap = argparse.ArgumentParser()
    ap.add_argument("-o", default="/dev/stdout")
    for k, d in (("W", 2), ("R", 16), ("hi", 0), ("E", 0), ("lds", 90000), ("stamp", 0), ("pair", 0), ("I0", 0), ("perm", 0), ("BL", 1), ("SB", 12), ("rot", 0), ("tab", 0)):
        ap.add_argument("--" + k, type=int, default=d)
    ap.add_argument("--flags", default="nt")
    ap.add_argument("--win", default="a")
    a = vars(ap.parse_args())
    out = a.pop("o")
    open(out, "w").write(gen(**a))
```
